```python
import torch

def _softmax(x, axis=-1):
    return torch.softmax(x, dim=axis)
def _gelu(x):
    return torch.nn.functional.gelu(x, approximate="tanh")
def _silu(x):
    return torch.nn.functional.silu(x)
def _sigmoid(x):
    return torch.sigmoid(x)
def _layernorm(x, axis=-1, eps=1e-5):
    m = x.mean(dim=axis, keepdim=True)
    v = x.var(dim=axis, keepdim=True, unbiased=False)
    return (x - m) / torch.sqrt(v + eps)
def _scatter_add(tgt, idx, src, axis=0):
    return tgt.clone().index_add_(axis, idx, src)
def _segment_sum(src, seg, n):
    out = torch.zeros((n,) + src.shape[1:], dtype=src.dtype)
    return out.index_add_(0, seg, src)
def _pad(x, pw):
    flat = tuple(v for pair in reversed(pw) for v in pair)
    return torch.nn.functional.pad(x, flat)

kernel_name = 'gated_mix__sliding_block_cached__glu_gated_reglu__decode'

def setup_inputs():

    _w = (lambda a: (lambda t: t.to(torch.bfloat16) if t.is_floating_point() else t)(torch.as_tensor(a)))
    def _A_setup():
        B, Sq, D = 4, 1, 512
        Hq, Hkv, Sk, Dh = 32, 8, 16384, 128
        assert Hq % Hkv == 0, (Hq, Hkv)
        return {
            "x": _w((lambda *s: torch.randn(*s, dtype=torch.bfloat16) * 0.05)(B, Sq, D)),
            "k_cache": _w((lambda *s: torch.randn(*s, dtype=torch.bfloat16) * 3.2)(B, Hkv, Sk, Dh)),
            "v_cache": _w((lambda *s: torch.randn(*s, dtype=torch.bfloat16) * 0.05)(B, Hkv, Sk, Dh)),
            "wq": _w((lambda *s: torch.randn(*s, dtype=torch.bfloat16) * 3.2)(D, Hq * Dh) * (D ** -0.5)),
            "wo": _w((lambda *s: torch.randn(*s, dtype=torch.bfloat16) * 0.05)(Hq * Dh, D) * ((Hq * Dh) ** -0.5)),
        }
    _A_in = _A_setup()

    def _B_setup():
        B, S, D, F = 4, 1, 512, 1792
        return {
            "x": _w((lambda *s: torch.randn(*s, dtype=torch.bfloat16) * 0.05)(B, S, D)),
            "W_gate": _w((lambda *s: torch.randn(*s, dtype=torch.bfloat16) * 0.2)(D, F) * (2.0 / D) ** 0.5),
            "W_up": _w((lambda *s: torch.randn(*s, dtype=torch.bfloat16) * 0.2)(D, F) * (2.0 / D) ** 0.5),
            "W_down": _w((lambda *s: torch.randn(*s, dtype=torch.bfloat16) * 0.2)(F, D) * (1.0 / F) ** 0.5),
        }
    _B_in = _B_setup()

    return {
        "A_x": _A_in["x"],
        "A_k_cache": _A_in["k_cache"],
        "A_v_cache": _A_in["v_cache"],
        "A_wq": _A_in["wq"],
        "A_wo": _A_in["wo"],
        "B_x": _B_in["x"],
        "B_W_gate": _B_in["W_gate"],
        "B_W_up": _B_in["W_up"],
        "B_W_down": _B_in["W_down"],
        "gate_w": _w((lambda *s: torch.randn(*s, dtype=torch.bfloat16) * 0.05)(512) * 16.0),
    }

def reference(A_x, A_k_cache, A_v_cache, A_wq, A_wo, B_x, B_W_gate, B_W_up, B_W_down, gate_w):
    def _A_ref(x, k_cache, v_cache, wq, wo):
        B, Sq, D = x.shape
        Hq, Dh = 32, 128
        Hkv, Sk = k_cache.shape[1], k_cache.shape[2]
        W = min(4096, max(256, Sk // 4))
        rep = Hq // Hkv
        q = (lambda x, *d: x.permute(*d))((x @ wq).reshape(B, Sq, Hq, Dh), 0, 2, 1, 3)
        k = (lambda x, n, axis: torch.repeat_interleave(x, n, dim=axis))(k_cache[:, :, Sk - W:, :], rep, axis=1)
        v = (lambda x, n, axis: torch.repeat_interleave(x, n, dim=axis))(v_cache[:, :, Sk - W:, :], rep, axis=1)
        scores = torch.einsum("bhqd,bhkd->bhqk", q, k) * (Dh ** -0.5)
        p = _softmax(scores, axis=-1)
        o = torch.einsum("bhqk,bhkd->bhqd", p, v)
        return (lambda x, *d: x.permute(*d))(o, 0, 2, 1, 3).reshape(B, Sq, Hq * Dh) @ wo

    def _B_ref(x, W_gate, W_up, W_down):
        gate = torch.einsum("bsd,df->bsf", x, W_gate)
        up = torch.einsum("bsd,df->bsf", x, W_up)
        gate = gate * (lambda x, dt: x.to(dt))(gate > 0, gate.dtype)
        h = gate * up
        return torch.einsum("bsf,fd->bsd", h, W_down)

    x = A_x
    g = _sigmoid((x * gate_w).sum(-1, keepdims=True))
    a = _A_ref(x, A_k_cache, A_v_cache, A_wq, A_wo)
    b = _B_ref(x, B_W_gate, B_W_up, B_W_down)
    return g * a + (1 - g) * b
```

```python
import sys

NAME = "gated_mix__sliding_block_cached__glu_gated_reglu__decode"
HEADER = open("cdna_kernels/%s.s.ref" % NAME).read().split("; Override launch geometry")[0]

WS_Q = 0x0
WS_H = 0x10000
WS_G = 0x18000
WS_ACC = 0x19000
WS_ML = 0x20000
WS_PART = 0x40000

L = []
def e(s=""):
    L.append("    " + s if s and not s.endswith(":") else s)

def kd(name, vgpr, sgpr=102):
    acc = (vgpr + 3) // 4 * 4
    return f""".amdhsa_kernel {name}
  .amdhsa_next_free_vgpr {vgpr}
  .amdhsa_next_free_sgpr {sgpr}
  .amdhsa_accum_offset {acc}
  .amdhsa_group_segment_fixed_size 0
  .amdhsa_kernarg_size 104
  .amdhsa_user_sgpr_count 2
  .amdhsa_user_sgpr_kernarg_segment_ptr 1
  .amdhsa_system_sgpr_workgroup_id_x 1
.end_amdhsa_kernel"""

def allreduce(regs, op, tmps):
    pad = max(0, 3 - len(regs))
    for dpp in ["quad_perm:[1,0,3,2]", "quad_perm:[2,3,0,1]", "row_half_mirror", "row_mirror"]:
        for r in regs:
            e(f"v_{op}_f32_dpp {r}, {r}, {r} {dpp} row_mask:0xf bank_mask:0xf")
        if pad: e(f"s_nop {pad}")
    for sw in ["v_permlane16_swap_b32", "v_permlane32_swap_b32"]:
        for r, t in zip(regs, tmps):
            e(f"v_mov_b32 {t}, {r}")
        e("s_nop 1")
        for r, t in zip(regs, tmps):
            e(f"{sw} {r}, {t}")
        for r, t in zip(regs, tmps):
            e(f"v_{op}_f32 {r}, {r}, {t}")
        e("s_nop 1")

def stage_x_to_lds(sx):
    e("v_lshlrev_b32 v1, 2, v0")
    for b in range(4):
        e(f"global_load_dword v{2+b}, v1, s[{sx}:{sx+1}] offset:{b*1024}")
    e("v_lshlrev_b32 v1, 5, v0")
    e("s_waitcnt vmcnt(0)")
    for b in range(4):
        e(f"v_lshlrev_b32 v6, 16, v{2+b}")
        e(f"v_and_b32 v7, 0xffff0000, v{2+b}")
        e(f"ds_write_b32 v1, v6 offset:{b*4}")
        e(f"ds_write_b32 v1, v7 offset:{16+b*4}")

def gemv_loads(sw, voff, stride, nload, dst, nt=True):
    for i in range(nload):
        e(f"global_load_dwordx4 v[{dst+4*i}:{dst+4*i+3}], {voff}, s[{sw}:{sw+1}]" + (" nt" if nt else ""))
        if i != nload - 1:
            e(f"v_add_u32 {voff}, {8*stride}, {voff}")

def gemv_fma(nload, src, acc, xaddr, xr, ur, first_wait_extra=0, total_after=0):
    for i in range(nload):
        e(f"ds_read_b128 v[{xr}:{xr+3}], {xaddr} offset:{i*128}")
        e(f"s_waitcnt vmcnt({nload-1-i+total_after}) lgkmcnt(0)")
        for d in range(4):
            e(f"v_lshlrev_b32 v{ur+2*d}, 16, v{src+4*i+d}")
            e(f"v_and_b32 v{ur+2*d+1}, 0xffff0000, v{src+4*i+d}")
        for b in range(4):
            for c in range(8):
                if i == 0:
                    e(f"v_mul_f32 v{acc+8*b+c}, v{xr+b}, v{ur+c}")
                else:
                    e(f"v_fmac_f32 v{acc+8*b+c}, v{xr+b}, v{ur+c}")

def gemv_reduce_write(acc, redbase, vtmp):
    e(f"v_lshrrev_b32 v{vtmp}, 3, v0")
    e(f"v_lshlrev_b32 v{vtmp}, 10, v{vtmp}          ; rg*1024")
    e(f"v_and_b32 v{vtmp+1}, 7, v0")
    e(f"v_lshl_add_u32 v{vtmp}, v{vtmp+1}, 5, v{vtmp}   ; + cg*32")
    for b in range(4):
        e(f"ds_write_b128 v{vtmp}, v[{acc+8*b}:{acc+8*b+3}] offset:{redbase+b*256}")
        e(f"ds_write_b128 v{vtmp}, v[{acc+8*b+4}:{acc+8*b+7}] offset:{redbase+b*256+16}")

def gemv_reduce_sum(redbase, vaddr, vdst, vt):
    e(f"v_lshlrev_b32 v{vaddr}, 2, v0")
    for g in range(4):
        for r in range(8):
            e(f"ds_read_b32 v{vt+r}, v{vaddr} offset:{redbase+(g*8+r)*1024}")
        e("s_waitcnt lgkmcnt(0)")
        for r in range(8):
            if g == 0 and r == 0:
                e(f"v_mov_b32 v{vdst}, v{vt}")
            else:
                e(f"v_add_f32 v{vdst}, v{vdst}, v{vt+r}")

def k1():
    e(".p2align 8")
    e(".type proj_kernel,@function")
    e("proj_kernel:")
    e("s_cmp_ge_u32 s2, 92")
    e("s_cbranch_scc1 L_k1_end")
    e("s_load_dwordx2 s[4:5], s[0:1], 0      ; x")
    e("s_load_dwordx2 s[6:7], s[0:1], 24     ; wq")
    e("s_load_dwordx2 s[8:9], s[0:1], 48     ; Wg")
    e("s_load_dwordx2 s[10:11], s[0:1], 56   ; Wu")
    e("s_load_dwordx2 s[12:13], s[0:1], 72   ; gate_w")
    e("s_load_dwordx2 s[14:15], s[0:1], 96   ; ws")
    e("s_waitcnt lgkmcnt(0)")
    stage_x_to_lds(4)
    e("v_lshrrev_b32 v10, 6, v0")
    e("v_lshlrev_b32 v10, 7, v10            ; w*128")
    e("v_bfe_u32 v11, v0, 3, 3              ; (l>>3)")
    e("v_add_u32 v10, v10, v11              ; row0")
    e("v_lshlrev_b32 v12, 4, v10")
    e("v_and_b32 v11, 7, v0")
    e("v_lshlrev_b32 v11, 4, v11")
    e("s_cmp_ge_u32 s2, 64")
    e("s_cbranch_scc1 L_k1_glu")
    e("s_lshl_b32 s16, s2, 7")
    e("v_lshlrev_b32 v13, 13, v10           ; row0*8192")
    e("v_add3_u32 v13, v13, v11, s16")
    gemv_loads(6, "v13", 8192, 16, 32)
    e("s_waitcnt lgkmcnt(0)")
    e("s_barrier")
    gemv_fma(16, 32, 160, "v12", 16, 20)
    gemv_reduce_write(160, 8192, 28)
    e("s_waitcnt lgkmcnt(0)")
    e("s_barrier")
    gemv_reduce_sum(8192, 28, 30, 16)
    e("v_cvt_pk_bf16_f32 v30, v30, v30")
    e("v_lshrrev_b32 v28, 6, v0")
    e("v_lshlrev_b32 v28, 13, v28")
    e("v_and_b32 v29, 63, v0")
    e("v_lshl_add_u32 v28, v29, 1, v28")
    e(f"v_add_u32 v28, s16, v28")
    e(f"global_store_short v28, v30, s[14:15] offset:{WS_Q}")
    e("s_cmp_lg_u32 s2, 0")
    e("s_cbranch_scc1 L_k1_end")
    e("v_mov_b32 v20, 0")
    e("v_mov_b32 v21, 0")
    e("v_mov_b32 v22, 0")
    e("v_mov_b32 v23, 0")
    e("v_lshlrev_b32 v28, 6, v0")
    e(f"v_add_u32 v28, {WS_ACC}, v28")
    for i in range(4):
        e(f"global_store_dwordx4 v28, v[20:23], s[14:15] offset:{16*i}")
    e("v_and_b32 v10, 63, v0")
    e("v_lshlrev_b32 v10, 4, v10            ; l*16 bytes")
    e("global_load_dwordx4 v[32:35], v10, s[12:13]   ; gate_w")
    e("v_lshrrev_b32 v11, 6, v0")
    e("v_lshl_add_u32 v11, v11, 10, v10     ; b*1024 + l*16")
    e("global_load_dwordx4 v[36:39], v11, s[4:5]     ; x")
    e("s_waitcnt vmcnt(0)")
    e("v_mov_b32 v40, 0")
    for d in range(4):
        e(f"v_lshlrev_b32 v41, 16, v{32+d}")
        e(f"v_lshlrev_b32 v42, 16, v{36+d}")
        e("v_mul_f32 v41, v41, v42")
        e(f"v_and_b32 v43, 0xffff0000, v{32+d}")
        e(f"v_and_b32 v44, 0xffff0000, v{36+d}")
        e("v_mul_f32 v43, v43, v44")
        e("v_cvt_pk_bf16_f32 v41, v41, v43")
        e("v_lshlrev_b32 v42, 16, v41")
        e("v_and_b32 v43, 0xffff0000, v41")
        e("v_add_f32 v40, v40, v42")
        e("v_add_f32 v40, v40, v43")
    e("s_nop 1")
    allreduce(["v40"], "add", ["v41"])
    e("v_cvt_pk_bf16_f32 v40, v40, v40")
    e("v_lshlrev_b32 v40, 16, v40")
    e("v_mul_f32 v41, 0xbfb8aa3b, v40       ; -log2e * s")
    e("v_exp_f32 v41, v41")
    e("s_nop 0")
    e("v_add_f32 v41, 1.0, v41")
    e("v_rcp_f32 v41, v41")
    e("s_nop 0")
    e("v_cvt_pk_bf16_f32 v41, v41, v41")
    e("v_lshlrev_b32 v41, 16, v41")
    e("v_lshrrev_b32 v11, 6, v0")
    e("v_lshlrev_b32 v11, 2, v11")
    e(f"v_add_u32 v11, {WS_G}, v11")
    e("v_and_b32 v10, 63, v0")
    e("v_cmp_eq_u32 vcc, 0, v10")
    e("s_and_saveexec_b64 s[20:21], vcc")
    e("s_cbranch_execz L_k1_gdone")
    e("global_store_dword v11, v41, s[14:15]")
    e("L_k1_gdone:")
    e("s_or_b64 exec, exec, s[20:21]")
    e("s_branch L_k1_end")
    e("L_k1_glu:")
    e("s_sub_u32 s16, s2, 64")
    e("s_lshl_b32 s16, s16, 7")
    e("s_movk_i32 s17, 3584")
    e("v_mul_lo_u32 v13, v10, s17           ; row0*3584")
    e("v_add3_u32 v13, v13, v11, s16")
    e("v_mov_b32 v14, v13")
    gemv_loads(8, "v13", 3584, 16, 32)
    gemv_loads(10, "v14", 3584, 16, 96)
    e("s_waitcnt lgkmcnt(0)")
    e("s_barrier")
    gemv_fma(16, 32, 160, "v12", 16, 20, total_after=16)
    gemv_fma(16, 96, 192, "v12", 16, 20)
    gemv_reduce_write(160, 8192, 28)
    e("s_waitcnt lgkmcnt(0)")
    e("s_barrier")
    gemv_reduce_sum(8192, 28, 30, 16)
    e("s_barrier")
    gemv_reduce_write(192, 8192, 28)
    e("s_waitcnt lgkmcnt(0)")
    e("s_barrier")
    gemv_reduce_sum(8192, 28, 31, 16)
    e("v_cvt_pk_bf16_f32 v30, v30, v31")
    e("v_and_b32 v31, 0xffff0000, v30")
    e("v_lshlrev_b32 v30, 16, v30")
    e("v_max_f32 v30, 0, v30")
    e("v_mul_f32 v30, v30, v31")
    e("v_cvt_pk_bf16_f32 v30, v30, v30")
    e("v_lshlrev_b32 v30, 16, v30")
    e("v_lshrrev_b32 v28, 6, v0")
    e("s_movk_i32 s17, 7168")
    e("v_mul_lo_u32 v28, v28, s17")
    e("v_and_b32 v29, 63, v0")
    e("v_lshl_add_u32 v28, v29, 2, v28")
    e("s_lshl_b32 s16, s16, 1")
    e("v_add_u32 v28, s16, v28")
    e(f"global_store_dword v28, v30, s[14:15] offset:0")
    e("L_k1_end:")
    e("s_endpgm")


QF, KF, VF, DC, SP, OA, UV = 0, 16, 80, 144, 160, 164, 196
def k2():
    e(".p2align 8")
    e(".type attn_kernel,@function")
    e("attn_kernel:")
    e("s_cmp_ge_u32 s2, 256")
    e("s_cbranch_scc1 L_k2_end")
    e("s_load_dwordx2 s[4:5], s[0:1], 8      ; K")
    e("s_load_dwordx2 s[6:7], s[0:1], 16     ; V")
    e("s_load_dwordx2 s[14:15], s[0:1], 96   ; ws")
    e("v_mov_b32 v210, v0")
    e("v_and_b32 v204, 63, v0               ; lane")
    e("v_lshrrev_b32 v205, 6, v0            ; wave")
    e("s_lshr_b32 s16, s2, 3")
    e("s_and_b32 s17, s2, 7                 ; split")
    e("s_lshl_b32 s18, s16, 22")
    e("s_lshl_b32 s19, s17, 17")
    e("s_add_u32 s18, s18, s19")
    e("s_add_u32 s18, s18, 0x300000")
    e("s_lshr_b32 s19, s16, 10")
    e("s_waitcnt lgkmcnt(0)")
    e("s_add_u32 s4, s4, s18")
    e("s_addc_u32 s5, s5, 0")
    e("s_add_u32 s6, s6, s18")
    e("s_addc_u32 s7, s7, 0")
    e("v_and_b32 v206, 3, v204")
    e("v_lshlrev_b32 v206, 8, v206")
    e("v_lshrrev_b32 v207, 4, v204")
    e("v_lshl_add_u32 v206, v207, 4, v206")
    e("s_lshl_b32 s19, s16, 10")
    e("v_add_u32 v206, s19, v206")
    for j in range(4):
        e(f"global_load_dwordx4 v[{QF+4*j}:{QF+4*j+3}], v206, s[14:15] offset:{WS_Q+64*j}")
    e("v_and_b32 v206, 15, v204")
    e("v_lshlrev_b32 v206, 8, v206")
    e("v_lshl_add_u32 v206, v207, 4, v206")
    e("v_lshl_add_u32 v206, v205, 12, v206")
    for c in range(4):
        for j in range(4):
            e(f"global_load_dwordx4 v[{KF+16*c+4*j}:{KF+16*c+4*j+3}], v206, s[4:5] offset:{64*j} nt")
        if c != 3:
            e("v_add_u32 v206, 0x8000, v206")
    e("v_and_b32 v206, 15, v204")
    e("v_lshlrev_b32 v206, 4, v206")
    e("v_lshl_add_u32 v206, v207, 15, v206")
    e("v_lshl_add_u32 v206, v205, 12, v206")
    for n in range(16):
        e(f"global_load_dwordx4 v[{VF+4*n}:{VF+4*n+3}], v206, s[6:7] offset:{256*n} nt")
    e("s_mov_b32 s20, 0xffff0000")
    e("s_mov_b32 s21, 0")
    e("s_mov_b32 s22, 0")
    e("s_mov_b32 s23, 0xffff")
    e("s_mov_b32 s24, 0")
    e("s_mov_b32 s25, 0xffff0000")
    for c in range(4):
        e(f"s_waitcnt vmcnt({16+12-4*c})")
        for j in range(4):
            cc = "0" if j == 0 else f"v[{DC+4*c}:{DC+4*c+3}]"
            e(f"v_mfma_f32_16x16x32_bf16 v[{DC+4*c}:{DC+4*c+3}], v[{QF+4*j}:{QF+4*j+3}], v[{KF+16*c+4*j}:{KF+16*c+4*j+3}], {cc}")
    e("s_nop 7")
    e("s_nop 1")
    for r in range(4):
        e(f"v_cndmask_b32 v{SP+r}, v{DC+r}, v{DC+4+r}, s[20:21]")
    for r in range(4):
        e(f"v_cndmask_b32 v{SP+r}, v{SP+r}, v{DC+8+r}, s[22:23]")
    for r in range(4):
        e(f"v_cndmask_b32 v{SP+r}, v{SP+r}, v{DC+12+r}, s[24:25]")
    M = [f"v{DC+r}" for r in range(4)]
    T = [f"v{DC+4+r}" for r in range(4)]
    for r in range(4):
        e(f"v_mov_b32 {M[r]}, v{SP+r}")
    e("s_nop 1")
    allreduce(M, "max", T)
    import math, struct
    cval = struct.unpack("<I", struct.pack("<f", (128 ** -0.5) * math.log2(math.e)))[0]
    e(f"s_mov_b32 s26, {cval:#x}")
    for r in range(4):
        e(f"v_mul_f32 {M[r]}, s26, {M[r]}")
    for r in range(4):
        e(f"v_fma_f32 v{SP+r}, v{SP+r}, s26, -{M[r]}")
    for r in range(4):
        e(f"v_exp_f32 v{SP+r}, v{SP+r}")
    e("s_nop 0")
    Lr = [f"v{DC+8+r}" for r in range(4)]
    for r in range(4):
        e(f"v_mov_b32 {Lr[r]}, v{SP+r}")
    e("s_nop 1")
    allreduce(Lr, "add", T)
    for n in range(16):
        e(f"s_waitcnt vmcnt({15-n})")
        for d in range(4):
            e(f"v_lshlrev_b32 v{UV+2*d}, 16, v{VF+4*n+d}")
            e(f"v_and_b32 v{UV+2*d+1}, 0xffff0000, v{VF+4*n+d}")
        for h in range(4):
            for j in range(8):
                if n == 0:
                    e(f"v_mul_f32_dpp v{OA+8*h+j}, v{SP+h}, v{UV+j} row_newbcast:{n} row_mask:0xf bank_mask:0xf")
                else:
                    e(f"v_fmac_f32_dpp v{OA+8*h+j}, v{SP+h}, v{UV+j} row_newbcast:{n} row_mask:0xf bank_mask:0xf")
    e("v_lshl_add_u32 v206, v205, 2, v207       ; w*4+g")
    e("v_lshlrev_b32 v206, 11, v206             ; *2048")
    e("v_and_b32 v208, 15, v204")
    e("v_lshl_add_u32 v206, v208, 5, v206")
    for h in range(4):
        e(f"ds_write_b128 v206, v[{OA+8*h}:{OA+8*h+3}] offset:{h*512}")
        e(f"ds_write_b128 v206, v[{OA+8*h+4}:{OA+8*h+7}] offset:{h*512+16}")
    for r in range(4):
        if r == 0:
            e(f"v_mov_b32 v208, {M[0]}")
            e(f"v_mov_b32 v209, {Lr[0]}")
        else:
            e(f"v_cmp_eq_u32 vcc, {r}, v204")
            e("s_nop 1")
            e(f"v_cndmask_b32 v208, v208, {M[r]}, vcc")
            e(f"v_cndmask_b32 v209, v209, {Lr[r]}, vcc")
    e("v_lshlrev_b32 v206, 5, v205")
    e("v_lshl_add_u32 v206, v204, 3, v206       ; w*32 + l*8")
    e("v_add_u32 v206, 0x10000, v206")
    e("v_cmp_gt_u32 vcc, 4, v204")
    e("s_and_saveexec_b64 s[28:29], vcc")
    e("ds_write_b64 v206, v[208:209]")
    e("s_or_b64 exec, exec, s[28:29]")
    e("s_waitcnt lgkmcnt(0)")
    e("s_barrier")
    e("v_lshrrev_b32 v1, 7, v210                  ; h")
    e("v_lshlrev_b32 v2, 3, v1                  ; h*8")
    e("v_add_u32 v2, 0x10000, v2")
    for w in range(8):
        e(f"ds_read_b64 v[{16+2*w}:{17+2*w}], v2 offset:{w*32}")
    e("s_waitcnt lgkmcnt(0)")
    e("v_max_f32 v3, v16, v18")
    for w in range(2, 8):
        e(f"v_max_f32 v3, v3, v{16+2*w}")
    for w in range(8):
        e(f"v_sub_f32 v{32+w}, v{16+2*w}, v3")
    for w in range(8):
        e(f"v_exp_f32 v{32+w}, v{32+w}")
    e("s_nop 0")
    e("v_mul_f32 v4, v32, v17")
    for w in range(1, 8):
        e(f"v_fmac_f32 v4, v{32+w}, v{17+2*w}")
    e("v_lshlrev_b32 v5, 2, v210")
    for w in range(8):
        for g in range(4):
            e(f"ds_read_b32 v{48+g}, v5 offset:{(w*4+g)*2048}")
        e("s_waitcnt lgkmcnt(0)")
        e("v_add_f32 v48, v48, v49")
        e("v_add_f32 v50, v50, v51")
        e("v_add_f32 v48, v48, v50")
        if w == 0:
            e("v_mul_f32 v6, v32, v48")
        else:
            e(f"v_fmac_f32 v6, v{32+w}, v48")
    e("s_lshl_b32 s19, s2, 11")
    e(f"s_add_u32 s19, s19, {WS_PART}")
    e("v_add_u32 v5, s19, v5")
    e("global_store_dword v5, v6, s[14:15]")
    e("v_and_b32 v7, 127, v210")
    e("v_cmp_eq_u32 vcc, 0, v7")
    e("s_and_saveexec_b64 s[28:29], vcc")
    e("s_cbranch_execz L_k2_mld")
    e("s_lshl_b32 s19, s2, 5")
    e(f"s_add_u32 s19, s19, {WS_ML}")
    e("v_lshl_add_u32 v7, v1, 3, s19")
    e("v_mov_b32 v8, v3")
    e("v_mov_b32 v9, v4")
    e("global_store_dwordx2 v7, v[8:9], s[14:15]")
    e("L_k2_mld:")
    e("s_or_b64 exec, exec, s[28:29]")
    e("L_k2_end:")
    e("s_endpgm")

def k3():
    e(".p2align 8")
    e(".type out_kernel,@function")
    e("out_kernel:")
    e("s_cmp_ge_u32 s2, 368")
    e("s_cbranch_scc1 L_k3_end")
    e("s_load_dwordx2 s[4:5], s[0:1], 32     ; wo")
    e("s_load_dwordx2 s[6:7], s[0:1], 64     ; Wd")
    e("s_load_dwordx2 s[8:9], s[0:1], 80     ; out")
    e("s_load_dwordx2 s[10:11], s[0:1], 88   ; debug")
    e("s_load_dwordx2 s[14:15], s[0:1], 96   ; ws")
    e("s_lshr_b32 s16, s2, 3                ; kg")
    e("s_and_b32 s17, s2, 7                 ; nb")
    e("v_lshrrev_b32 v10, 6, v0")
    e("v_lshlrev_b32 v10, 5, v10")
    e("v_bfe_u32 v11, v0, 3, 3")
    e("v_add_u32 v10, v10, v11")
    e("v_lshlrev_b32 v12, 4, v10")
    e("v_and_b32 v11, 7, v0")
    e("v_lshlrev_b32 v11, 4, v11")
    e("s_lshl_b32 s18, s17, 7               ; nb*128")
    e("v_lshlrev_b32 v13, 10, v10           ; row0*1024")
    e("v_add3_u32 v13, v13, v11, s18")
    e("s_waitcnt lgkmcnt(0)")
    e("s_cmp_ge_u32 s16, 32")
    e("s_cbranch_scc1 L_k3_down")
    e("s_lshl_b32 s19, s16, 17              ; kg*128*1024")
    e("v_add_u32 v13, s19, v13")
    gemv_loads(4, "v13", 1024, 4, 32)
    e("s_lshr_b32 s20, s16, 2               ; kvh")
    e("s_and_b32 s21, s16, 3                ; hh")
    e("s_lshl_b32 s20, s20, 14              ; kvh*8*2048")
    e("s_lshl_b32 s21, s21, 9               ; hh*512")
    e("s_add_u32 s20, s20, s21")
    e(f"s_add_u32 s20, s20, {WS_PART}")
    e("v_lshrrev_b32 v14, 6, v0             ; b")
    e("v_lshlrev_b32 v15, 17, v14           ; b*8*8*2048")
    e("v_and_b32 v16, 63, v0")
    e("v_lshl_add_u32 v15, v16, 3, v15")
    e("v_add_u32 v15, s20, v15")
    for s in range(8):
        e(f"global_load_dwordx2 v[{64+2*s}:{65+2*s}], v15, s[14:15]")
        e("v_add_u32 v15, 0x800, v15")
    e("s_lshr_b32 s20, s16, 2")
    e("s_and_b32 s21, s16, 3")
    e("s_lshl_b32 s20, s20, 8               ; kvh*8*32")
    e("s_lshl_b32 s21, s21, 3")
    e("s_add_u32 s20, s20, s21")
    e(f"s_add_u32 s20, s20, {WS_ML}")
    e("v_lshlrev_b32 v15, 11, v14           ; b*8*8*32")
    e("v_add_u32 v15, s20, v15")
    for s in range(8):
        e(f"global_load_dwordx2 v[{80+2*s}:{81+2*s}], v15, s[14:15] offset:{s*32}")
    e("s_waitcnt vmcnt(0)")
    e("v_max_f32 v3, v80, v82")
    for s in range(2, 8):
        e(f"v_max_f32 v3, v3, v{80+2*s}")
    for s in range(8):
        e(f"v_sub_f32 v{96+s}, v{80+2*s}, v3")
    for s in range(8):
        e(f"v_exp_f32 v{96+s}, v{96+s}")
    e("s_nop 0")
    e("v_mul_f32 v4, v96, v81")
    e("v_mul_f32 v5, v96, v64")
    e("v_mul_f32 v6, v96, v65")
    for s in range(1, 8):
        e(f"v_fmac_f32 v4, v{96+s}, v{81+2*s}")
        e(f"v_fmac_f32 v5, v{96+s}, v{64+2*s}")
        e(f"v_fmac_f32 v6, v{96+s}, v{65+2*s}")
    e("v_rcp_f32 v4, v4")
    e("s_nop 0")
    e("v_mul_f32 v5, v5, v4")
    e("v_mul_f32 v6, v6, v4")
    e("v_cvt_pk_bf16_f32 v5, v5, v6")
    e("v_and_b32 v6, 0xffff0000, v5")
    e("v_lshlrev_b32 v5, 16, v5")
    e("v_lshlrev_b32 v15, 5, v16")
    e("v_lshl_add_u32 v15, v14, 2, v15")
    e("ds_write_b32 v15, v5")
    e("ds_write_b32 v15, v6 offset:16")
    e("s_branch L_k3_common")
    e("L_k3_down:")
    e("s_sub_u32 s19, s16, 32")
    e("s_lshl_b32 s20, s19, 17")
    e("v_add_u32 v13, s20, v13")
    gemv_loads(6, "v13", 1024, 4, 32)
    e("v_lshrrev_b32 v14, 6, v0")
    e("s_movk_i32 s21, 7168")
    e("v_mul_lo_u32 v15, v14, s21")
    e("v_and_b32 v16, 63, v0")
    e("v_lshl_add_u32 v15, v16, 3, v15")
    e("s_lshl_b32 s20, s19, 9")
    e(f"s_add_u32 s20, s20, {WS_H}")
    e("v_add_u32 v15, s20, v15")
    e("global_load_dwordx2 v[6:7], v15, s[14:15]")
    e("v_lshlrev_b32 v15, 5, v16")
    e("v_lshl_add_u32 v15, v14, 2, v15")
    e("s_waitcnt vmcnt(0)")
    e("ds_write_b32 v15, v6")
    e("ds_write_b32 v15, v7 offset:16")
    e("L_k3_common:")
    e("s_waitcnt lgkmcnt(0)")
    e("s_barrier")
    gemv_fma(4, 32, 160, "v12", 16, 20)
    gemv_reduce_write(160, 8192, 28)
    e("s_waitcnt lgkmcnt(0)")
    e("s_barrier")
    gemv_reduce_sum(8192, 28, 30, 16)
    e("s_cmp_ge_u32 s16, 32")
    e("s_cselect_b32 s19, 0x2000, 0")
    e(f"s_add_u32 s19, s19, {WS_ACC}")
    e("s_lshl_b32 s20, s17, 8               ; nb*64*4")
    e("s_add_u32 s19, s19, s20")
    e("v_lshrrev_b32 v14, 6, v0")
    e("v_lshlrev_b32 v28, 11, v14           ; b*2048")
    e("v_and_b32 v16, 63, v0")
    e("v_lshl_add_u32 v28, v16, 2, v28")
    e("v_add_u32 v29, s19, v28")
    e("global_atomic_add_f32 v29, v30, s[14:15]")
    e("s_waitcnt vmcnt(0)")
    e("s_barrier")
    e("v_cmp_eq_u32 vcc, 0, v0")
    e("s_and_saveexec_b64 s[28:29], vcc")
    e("s_cbranch_execz L_k3_cnt")
    e("v_mov_b32 v1, 1")
    e("s_lshl_b32 s20, s17, 2")
    e("v_mov_b32 v2, s20")
    e("global_atomic_add v3, v2, v1, s[10:11] sc0")
    e("s_waitcnt vmcnt(0)")
    e("v_mov_b32 v4, 0")
    e("ds_write_b32 v4, v3 offset:4096")
    e("L_k3_cnt:")
    e("s_or_b64 exec, exec, s[28:29]")
    e("s_waitcnt lgkmcnt(0)")
    e("s_barrier")
    e("v_mov_b32 v4, 0")
    e("ds_read_b32 v3, v4 offset:4096")
    e("s_waitcnt lgkmcnt(0)")
    e("v_readfirstlane_b32 s20, v3")
    e("s_cmp_lg_u32 s20, 45")
    e("s_cbranch_scc1 L_k3_end")
    e(f"s_movk_i32 s19, 0")
    e(f"s_lshl_b32 s20, s17, 8")
    e(f"s_add_u32 s19, s20, {WS_ACC}")
    e("v_add_u32 v29, s19, v28")
    e("global_load_dword v30, v29, s[14:15] sc1")
    e("global_load_dword v31, v29, s[14:15] offset:0x800 sc1")
    e(f"v_lshlrev_b32 v15, 2, v14")
    e(f"v_add_u32 v15, {WS_G}, v15")
    e("global_load_dword v32, v15, s[14:15]")
    e("s_waitcnt vmcnt(0)")
    e("v_cvt_pk_bf16_f32 v30, v30, v31")
    e("v_and_b32 v31, 0xffff0000, v30")
    e("v_lshlrev_b32 v30, 16, v30")
    e("v_sub_f32 v33, 1.0, v32")
    e("v_cvt_pk_bf16_f32 v33, v33, v33")
    e("v_lshlrev_b32 v33, 16, v33")
    e("v_mul_f32 v30, v32, v30")
    e("v_mul_f32 v31, v33, v31")
    e("v_cvt_pk_bf16_f32 v30, v30, v31")
    e("v_and_b32 v31, 0xffff0000, v30")
    e("v_lshlrev_b32 v30, 16, v30")
    e("v_add_f32 v30, v30, v31")
    e("v_cvt_pk_bf16_f32 v30, v30, v30")
    e("v_lshlrev_b32 v15, 10, v14           ; b*1024")
    e("v_lshl_add_u32 v15, v16, 1, v15")
    e("s_lshl_b32 s20, s17, 7")
    e("v_add_u32 v15, s20, v15")
    e("global_store_short v15, v30, s[8:9]")
    e("L_k3_end:")
    e("s_endpgm")

k1(); k2(); k3()
body = "\n".join(L)
body = body.replace("global_store_dword v28, v30, s[14:15] offset:0", f"v_add_u32 v28, {WS_H}, v28\n    global_store_dword v28, v30, s[14:15]")
body = body.replace("global_load_dword v31, v29, s[14:15] offset:0x800 sc1", "v_add_u32 v29, 0x2000, v29\n    global_load_dword v31, v29, s[14:15] sc1")

out = HEADER
out += "; @launch kernel=proj_kernel grid=(92,1,1) block=(256,1,1) lds=40960\n"
out += "; @launch kernel=attn_kernel grid=(256,1,1) block=(512,1,1) lds=65792\n"
out += "; @launch kernel=out_kernel grid=(368,1,1) block=(256,1,1) lds=40960\n"
out += '.amdgcn_target "amdgcn-amd-amdhsa--gfx950"\n.text\n'
out += ".globl proj_kernel\n.globl attn_kernel\n.globl out_kernel\n"
out += body + "\n"
out += '.section .rodata,"a"\n.p2align 6\n'
out += kd("proj_kernel", 224) + "\n.p2align 6\n" + kd("attn_kernel", 212) + "\n.p2align 6\n" + kd("out_kernel", 192) + "\n"
open(sys.argv[1] if len(sys.argv) > 1 else "cdna_kernels/%s.s" % NAME, "w").write(out)
print("written", len(out))
```

```python
import sys, math, struct

NAME = "gated_mix__sliding_block_cached__glu_gated_reglu__decode"
KNAME = NAME + "_kernel"
HEADER = open("cdna_kernels/%s.s.ref" % NAME).read().split("; Override launch geometry")[0]
STAMP = len(sys.argv) > 2

WS_EPOCH = 0x0
WS_QP = 0x1000
WS_GP = 0x81000
WS_PART = 0x100000
WS_ML = 0x200000
WS_OUTP = 0x210000
WS_STAMP = 0x400000

LDS_Q = 131072
LDS_G = LDS_Q + 1024
LDS_TOTAL = LDS_Q + 1024 + 64

L = []
def e(s=""):
    L.append("    " + s if s and not s.endswith(":") else s)
nst = [0]
def stamp():
    if STAMP:
        k = nst[0]; nst[0] += 1
        e(f"s_memrealtime s[{70+2*k}:{71+2*k}]")

TID, LANE, WAVE, G4, TAG = 250, 251, 252, 253, 254
QF, KF, VF, DC, SP, OA, UV = 0, 16, 80, 144, 160, 164, 196
T0 = 204
TW = 224
SPIN_LIMIT = 200000

def allreduce(regs, op, tmps):
    pad = max(0, 3 - len(regs))
    for dpp in ["quad_perm:[1,0,3,2]", "quad_perm:[2,3,0,1]", "row_half_mirror", "row_mirror"]:
        for r in regs:
            e(f"v_{op}_f32_dpp {r}, {r}, {r} {dpp} row_mask:0xf bank_mask:0xf")
        if pad: e(f"s_nop {pad}")
    for sw in ["v_permlane16_swap_b32", "v_permlane32_swap_b32"]:
        for r, t in zip(regs, tmps):
            e(f"v_mov_b32 {t}, {r}")
        e("s_nop 1")
        for r, t in zip(regs, tmps):
            e(f"{sw} {r}, {t}")
        for r, t in zip(regs, tmps):
            e(f"v_{op}_f32 {r}, {r}, {t}")
        e("s_nop 1")

spin_id = [0]
def spin(load_fn, tagregs, tmp):
    i = spin_id[0]; spin_id[0] += 1
    e(f"s_mov_b32 s40, 0")
    e(f"L_spin{i}:")
    load_fn()
    e("s_waitcnt vmcnt(0)")
    e(f"v_xor_b32 v{tmp}, v{tagregs[0]}, v{TAG}")
    for t in tagregs[1:]:
        e(f"v_xor_b32 v{tmp+1}, v{t}, v{TAG}")
        e(f"v_or_b32 v{tmp}, v{tmp}, v{tmp+1}")
    e(f"v_cmp_ne_u32 vcc, 0, v{tmp}")
    e(f"s_cbranch_vccz L_spind{i}")
    e("s_sleep 1")
    e("s_add_u32 s40, s40, 1")
    e(f"s_cmp_lt_u32 s40, {SPIN_LIMIT}")
    e(f"s_cbranch_scc1 L_spin{i}")
    e(f"L_spind{i}:")

def gemv2(wsrc, xr, acc):
    for i in range(2):
        for d in range(4):
            e(f"v_lshlrev_b32 v{UV+2*d}, 16, v{wsrc+4*i+d}")
            e(f"v_and_b32 v{UV+2*d+1}, 0xffff0000, v{wsrc+4*i+d}")
        for b in range(4):
            for c in range(8):
                op = "v_mul_f32" if i == 0 else "v_fmac_f32"
                e(f"{op} v{acc+8*b+c}, v{xr+4*i+b}, v{UV+c}")

def kernel():
    e("s_cmp_ge_u32 s2, 256")
    e("s_cbranch_scc1 L_end")
    e("s_load_dwordx4 s[4:7], s[0:1], 0      ; x, K")
    e("s_load_dwordx4 s[8:11], s[0:1], 16    ; V, wq")
    e("s_load_dwordx2 s[12:13], s[0:1], 32   ; wo")
    e("s_load_dwordx4 s[16:19], s[0:1], 48")
    e("s_load_dwordx4 s[20:23], s[0:1], 64")
    e("s_load_dwordx2 s[24:25], s[0:1], 80   ; out")
    e("s_load_dwordx2 s[14:15], s[0:1], 96   ; ws")
    e(f"v_mov_b32 v{TID}, v0")
    e(f"v_and_b32 v{LANE}, 63, v0")
    e(f"v_lshrrev_b32 v{WAVE}, 6, v0")
    e(f"v_lshrrev_b32 v{G4}, 4, v{LANE}")
    e("s_lshr_b32 s26, s2, 3                ; bk")
    e("s_and_b32 s27, s2, 7")
    e("s_lshr_b32 s28, s2, 2                ; cbA")
    e("s_and_b32 s29, s2, 3                 ; ksA")
    e("s_lshr_b32 s30, s2, 1")
    e("s_mul_i32 s31, s30, 2341             ; j*2341>>16 = j/28 for j<112")
    e("s_lshr_b32 s31, s31, 16              ; ksB")
    e("s_mul_i32 s32, s31, 28")
    e("s_sub_u32 s30, s30, s32              ; cbB")
    e("s_and_b32 s33, s2, 1                 ; wsel")
    e("s_min_u32 s38, s31, 3")
    e(f"v_lshrrev_b32 v{T0}, 3, v{LANE}")
    e(f"v_lshl_add_u32 v{T0}, v{WAVE}, 4, v{T0}     ; r = w*16 + (l>>3)")
    e(f"v_and_b32 v{T0+1}, 7, v{LANE}")
    e(f"v_lshlrev_b32 v{T0+1}, 4, v{T0+1}")
    e("s_waitcnt lgkmcnt(0)")
    stamp()
    e(f"v_mov_b32 v{T0+2}, 0")
    e(f"global_load_dword v{TAG}, v{T0+2}, s[14:15] sc1")
    e("s_lshl_b32 s34, s29, 8")
    e(f"v_lshl_add_u32 v{T0+2}, v{T0}, 1, s34")
    for i in range(2):
        for b in range(4):
            e(f"global_load_ushort v{DC+4*i+b}, v{T0+2}, s[4:5] offset:{b*1024+i*16}")
    e("s_lshl_b32 s34, s38, 8")
    e(f"v_lshl_add_u32 v{T0+2}, v{T0}, 1, s34")
    for i in range(2):
        for b in range(4):
            e(f"global_load_ushort v{DC+8+4*i+b}, v{T0+2}, s[4:5] offset:{b*1024+i*16}")
    e("s_lshl_b32 s34, s29, 20")
    e("s_lshl_b32 s35, s28, 7")
    e("s_add_u32 s34, s34, s35")
    e(f"v_lshlrev_b32 v{T0+2}, 13, v{T0}")
    e(f"v_add3_u32 v{T0+2}, v{T0+2}, v{T0+1}, s34")
    e(f"global_load_dwordx4 v[{VF}:{VF+3}], v{T0+2}, s[10:11] nt")
    e(f"v_add_u32 v{T0+2}, 0x10000, v{T0+2}")
    e(f"global_load_dwordx4 v[{VF+4}:{VF+7}], v{T0+2}, s[10:11] nt")
    e("s_cmp_eq_u32 s33, 0")
    e("s_cselect_b32 s36, s16, s18")
    e("s_cselect_b32 s37, s17, s19")
    e("s_min_u32 s38, s31, 3")
    e("s_mul_i32 s34, s38, 128*3584")
    e("s_lshl_b32 s35, s30, 7")
    e("s_add_u32 s34, s34, s35")
    e("s_movk_i32 s35, 3584")
    e(f"v_mul_lo_u32 v{T0+2}, v{T0}, s35")
    e(f"v_add3_u32 v{T0+2}, v{T0+2}, v{T0+1}, s34")
    e(f"global_load_dwordx4 v[{VF+8}:{VF+11}], v{T0+2}, s[36:37] nt")
    e(f"v_add_u32 v{T0+2}, {8*3584}, v{T0+2}")
    e(f"global_load_dwordx4 v[{VF+12}:{VF+15}], v{T0+2}, s[36:37] nt")
    e("s_lshl_b32 s34, s26, 22")
    e("s_lshl_b32 s35, s27, 17")
    e("s_add_u32 s34, s34, s35")
    e("s_add_u32 s34, s34, 0x300000")
    e("s_add_u32 s6, s6, s34")
    e("s_addc_u32 s7, s7, 0")
    e("s_add_u32 s8, s8, s34")
    e("s_addc_u32 s9, s9, 0")
    e(f"v_and_b32 v{T0+2}, 15, v{LANE}")
    e(f"v_lshlrev_b32 v{T0+2}, 8, v{T0+2}")
    e(f"v_lshl_add_u32 v{T0+2}, v{G4}, 4, v{T0+2}")
    e(f"v_lshl_add_u32 v{T0+2}, v{WAVE}, 12, v{T0+2}")
    for c in range(4):
        for j in range(4):
            e(f"global_load_dwordx4 v[{KF+16*c+4*j}:{KF+16*c+4*j+3}], v{T0+2}, s[6:7] offset:{64*j} nt")
        if c != 3:
            e(f"v_add_u32 v{T0+2}, 0x8000, v{T0+2}")
    stamp()
    e("s_waitcnt vmcnt(16)")
    e(f"v_add_u32 v{TAG}, 1, v{TAG}")
    for r in range(16):
        e(f"v_lshlrev_b32 v{DC+r}, 16, v{DC+r}")
    gemv2(VF, DC, OA)
    e(f"v_lshrrev_b32 v{T0+2}, 3, v{TID}")
    e(f"v_lshlrev_b32 v{T0+2}, 10, v{T0+2}")
    e(f"v_lshl_add_u32 v{T0+2}, v{T0+1}, 1, v{T0+2}    ; + cg*32")
    for b in range(4):
        e(f"ds_write_b128 v{T0+2}, v[{OA+8*b}:{OA+8*b+3}] offset:{b*256}")
        e(f"ds_write_b128 v{T0+2}, v[{OA+8*b+4}:{OA+8*b+7}] offset:{b*256+16}")
    e("s_waitcnt lgkmcnt(0)")
    gemv2(VF+8, DC+8, OA)
    e(f"v_add_u32 v{T0+2}, 0x10000, v{T0+2}")
    for b in range(4):
        e(f"ds_write_b128 v{T0+2}, v[{OA+8*b}:{OA+8*b+3}] offset:{b*256}")
        e(f"ds_write_b128 v{T0+2}, v[{OA+8*b+4}:{OA+8*b+7}] offset:{b*256+16}")
    e("s_waitcnt lgkmcnt(0)")
    e("s_barrier")
    e(f"v_lshrrev_b32 v{T0+2}, 8, v{TID}")
    e(f"v_lshlrev_b32 v{T0+2}, 16, v{T0+2}")
    e(f"v_and_b32 v{T0+3}, 255, v{TID}")
    e(f"v_lshl_add_u32 v{T0+2}, v{T0+3}, 2, v{T0+2}")
    for g in range(8):
        for r in range(8):
            e(f"ds_read_b32 v{DC+r}, v{T0+2} offset:{(g*8+r)*1024}")
        e("s_waitcnt lgkmcnt(0)")
        for r in range(8):
            if g == 0 and r == 0: e(f"v_mov_b32 v{T0+4}, v{DC}")
            else: e(f"v_add_f32 v{T0+4}, v{T0+4}, v{DC+r}")
    e(f"v_mov_b32 v{T0+5}, v{TAG}")
    e("s_lshl_b32 s34, s29, 17              ; ksA*4*4096*8")
    e("s_lshl_b32 s35, s28, 9               ; cbA*64*8")
    e("s_add_u32 s34, s34, s35")
    e(f"s_add_u32 s34, s34, {WS_QP}")
    e(f"v_lshrrev_b32 v{T0+6}, 6, v{T0+3}          ; b")
    e(f"v_and_b32 v{T0+7}, 63, v{TID}")
    e(f"v_lshlrev_b32 v{T0+8}, 15, v{T0+6}         ; b*4096*8")
    e(f"v_lshl_add_u32 v{T0+8}, v{T0+7}, 3, v{T0+8}")
    e(f"v_add_u32 v{T0+8}, s34, v{T0+8}")
    e("s_lshl_b32 s35, s33, 2")
    e("s_add_u32 s35, s35, s31                ; w*4+ks")
    e("s_mul_i32 s35, s35, 4*1792*8")
    e("s_lshl_b32 s34, s30, 9")
    e("s_add_u32 s35, s35, s34")
    e(f"s_add_u32 s35, s35, {WS_GP}")
    e("s_movk_i32 s34, 1792*8")
    e(f"v_mul_lo_u32 v{T0+9}, v{T0+6}, s34")
    e(f"v_lshl_add_u32 v{T0+9}, v{T0+7}, 3, v{T0+9}")
    e(f"v_add_u32 v{T0+9}, s35, v{T0+9}")
    e(f"v_cmp_gt_u32 vcc, 256, v{TID}")
    e("s_nop 1")
    e(f"v_cndmask_b32 v{T0+8}, v{T0+9}, v{T0+8}, vcc")
    e("s_cmp_lt_u32 s2, 224")
    e("s_cselect_b64 s[42:43], -1, vcc")
    e("s_and_saveexec_b64 s[44:45], s[42:43]")
    e(f"global_store_dwordx2 v{T0+8}, v[{T0+4}:{T0+5}], s[14:15] sc1")
    e("s_or_b64 exec, exec, s[44:45]")
    stamp()
    e("s_lshr_b32 s34, s26, 3               ; b")
    e("s_and_b32 s35, s26, 7                ; kvh")
    e("s_lshl_b32 s34, s34, 15")
    e("s_lshl_b32 s35, s35, 12")
    e("s_add_u32 s34, s34, s35")
    e(f"s_add_u32 s34, s34, {WS_QP}")
    e(f"v_lshl_add_u32 v{T0+2}, v{TID}, 3, s34")
    def ldq():
        for ks in range(4):
            e(f"global_load_dwordx2 v[{DC+2*ks}:{DC+2*ks+1}], v{T0+2}, s[14:15] sc1")
            if ks != 3: e(f"v_add_u32 v{T0+2}, 0x20000, v{T0+2}")
        e(f"v_subrev_u32 v{T0+2}, 0x60000, v{T0+2}")
    spin(ldq, [DC+1, DC+3, DC+5, DC+7], T0+3)
    e(f"v_add_f32 v{DC}, v{DC}, v{DC+2}")
    e(f"v_add_f32 v{DC+4}, v{DC+4}, v{DC+6}")
    e(f"v_add_f32 v{DC}, v{DC}, v{DC+4}")
    e(f"v_cvt_pk_bf16_f32 v{DC}, v{DC}, v{DC}")
    e(f"v_lshlrev_b32 v{T0+2}, 1, v{TID}")
    e(f"v_add_u32 v{T0+2}, {LDS_Q}, v{T0+2}")
    e(f"ds_write_b16 v{T0+2}, v{DC}")
    e("s_waitcnt lgkmcnt(0)")
    e("s_barrier")
    e(f"v_and_b32 v{T0+2}, 3, v{LANE}")
    e(f"v_lshlrev_b32 v{T0+2}, 8, v{T0+2}")
    e(f"v_lshl_add_u32 v{T0+2}, v{G4}, 4, v{T0+2}")
    e(f"v_add_u32 v{T0+2}, {LDS_Q}, v{T0+2}")
    for j in range(4):
        e(f"ds_read_b128 v[{QF+4*j}:{QF+4*j+3}], v{T0+2} offset:{64*j}")
    e(f"v_and_b32 v{T0+3}, 15, v{LANE}")
    e(f"v_lshlrev_b32 v{T0+3}, 4, v{T0+3}")
    e(f"v_lshl_add_u32 v{T0+3}, v{G4}, 15, v{T0+3}")
    e(f"v_lshl_add_u32 v{T0+3}, v{WAVE}, 12, v{T0+3}")
    for n in range(16):
        e(f"global_load_dwordx4 v[{VF+4*n}:{VF+4*n+3}], v{T0+3}, s[8:9] offset:{256*n} nt")
    e("s_lshl_b32 s34, s26, 17")
    e("s_lshl_b32 s35, s27, 7")
    e("s_add_u32 s34, s34, s35")
    e(f"v_lshlrev_b32 v{T0+3}, 10, v{T0}")
    e(f"v_add3_u32 v{T0+3}, v{T0+3}, v{T0+1}, s34")
    e(f"global_load_dwordx4 v[{TW+8}:{TW+11}], v{T0+3}, s[12:13] nt")
    e(f"global_load_dwordx4 v[{TW+12}:{TW+15}], v{T0+3}, s[12:13] offset:0 nt")
    e("s_min_u32 s34, s26, 13")
    e("s_lshl_b32 s34, s34, 17")
    e("s_add_u32 s34, s34, s35")
    e(f"v_lshlrev_b32 v{T0+3}, 10, v{T0}")
    e(f"v_add3_u32 v{T0+3}, v{T0+3}, v{T0+1}, s34")
    e(f"global_load_dwordx4 v[{TW}:{TW+3}], v{T0+3}, s[20:21] nt")
    e(f"global_load_dwordx4 v[{TW+4}:{TW+7}], v{T0+3}, s[20:21] offset:0 nt")
    e("s_mov_b32 s46, 0xffff0000")
    e("s_mov_b32 s47, 0")
    e("s_mov_b32 s48, 0")
    e("s_mov_b32 s49, 0xffff")
    e("s_mov_b32 s50, 0")
    e("s_mov_b32 s51, 0xffff0000")
    e("s_waitcnt lgkmcnt(0)")
    stamp()
    for c in range(4):
        for j in range(4):
            cc = "0" if j == 0 else f"v[{DC+4*c}:{DC+4*c+3}]"
            e(f"v_mfma_f32_16x16x32_bf16 v[{DC+4*c}:{DC+4*c+3}], v[{QF+4*j}:{QF+4*j+3}], v[{KF+16*c+4*j}:{KF+16*c+4*j+3}], {cc}")
    e("s_nop 7")
    e("s_nop 1")
    for r in range(4):
        e(f"v_cndmask_b32 v{SP+r}, v{DC+r}, v{DC+4+r}, s[46:47]")
    for r in range(4):
        e(f"v_cndmask_b32 v{SP+r}, v{SP+r}, v{DC+8+r}, s[48:49]")
    for r in range(4):
        e(f"v_cndmask_b32 v{SP+r}, v{SP+r}, v{DC+12+r}, s[50:51]")
    M = [f"v{DC+r}" for r in range(4)]
    T = [f"v{DC+4+r}" for r in range(4)]
    for r in range(4):
        e(f"v_mov_b32 {M[r]}, v{SP+r}")
    e("s_nop 1")
    allreduce(M, "max", T)
    cval = struct.unpack("<I", struct.pack("<f", (128 ** -0.5) * math.log2(math.e)))[0]
    e(f"s_mov_b32 s52, {cval:#x}")
    for r in range(4):
        e(f"v_mul_f32 {M[r]}, s52, {M[r]}")
    for r in range(4):
        e(f"v_fma_f32 v{SP+r}, v{SP+r}, s52, -{M[r]}")
    for r in range(4):
        e(f"v_exp_f32 v{SP+r}, v{SP+r}")
    e("s_nop 0")
    Lr = [f"v{DC+8+r}" for r in range(4)]
    for r in range(4):
        e(f"v_mov_b32 {Lr[r]}, v{SP+r}")
    e("s_nop 1")
    allreduce(Lr, "add", T)
    for n in range(16):
        e(f"s_waitcnt vmcnt({15-n+4})")
        for d in range(4):
            e(f"v_lshlrev_b32 v{UV+2*d}, 16, v{VF+4*n+d}")
            e(f"v_and_b32 v{UV+2*d+1}, 0xffff0000, v{VF+4*n+d}")
        for h in range(4):
            for j in range(8):
                op = "v_mul_f32_dpp" if n == 0 else "v_fmac_f32_dpp"
                e(f"{op} v{OA+8*h+j}, v{SP+h}, v{UV+j} row_newbcast:{n} row_mask:0xf bank_mask:0xf")
    stamp()
    e(f"v_lshl_add_u32 v{T0+2}, v{WAVE}, 2, v{G4}")
    e(f"v_lshlrev_b32 v{T0+2}, 11, v{T0+2}")
    e(f"v_and_b32 v{T0+3}, 15, v{LANE}")
    e(f"v_lshl_add_u32 v{T0+2}, v{T0+3}, 5, v{T0+2}")
    for h in range(4):
        e(f"ds_write_b128 v{T0+2}, v[{OA+8*h}:{OA+8*h+3}] offset:{h*512}")
        e(f"ds_write_b128 v{T0+2}, v[{OA+8*h+4}:{OA+8*h+7}] offset:{h*512+16}")
    for r in range(4):
        if r == 0:
            e(f"v_mov_b32 v{T0+4}, {M[0]}")
            e(f"v_mov_b32 v{T0+5}, {Lr[0]}")
        else:
            e(f"v_cmp_eq_u32 vcc, {r}, v{LANE}")
            e("s_nop 1")
            e(f"v_cndmask_b32 v{T0+4}, v{T0+4}, {M[r]}, vcc")
            e(f"v_cndmask_b32 v{T0+5}, v{T0+5}, {Lr[r]}, vcc")
    e(f"v_lshlrev_b32 v{T0+2}, 5, v{WAVE}")
    e(f"v_lshl_add_u32 v{T0+2}, v{LANE}, 3, v{T0+2}")
    e(f"v_add_u32 v{T0+2}, 0x10000, v{T0+2}")
    e(f"v_cmp_gt_u32 vcc, 4, v{LANE}")
    e("s_and_saveexec_b64 s[44:45], vcc")
    e(f"ds_write_b64 v{T0+2}, v[{T0+4}:{T0+5}]")
    e("s_or_b64 exec, exec, s[44:45]")
    e("s_waitcnt lgkmcnt(0)")
    e("s_barrier")
    e(f"v_lshrrev_b32 v1, 7, v{TID}")
    e("v_lshlrev_b32 v2, 3, v1")
    e("v_add_u32 v2, 0x10000, v2")
    for w in range(8):
        e(f"ds_read_b64 v[{16+2*w}:{17+2*w}], v2 offset:{w*32}")
    e("s_waitcnt lgkmcnt(0)")
    e("v_max_f32 v3, v16, v18")
    for w in range(2, 8):
        e(f"v_max_f32 v3, v3, v{16+2*w}")
    for w in range(8):
        e(f"v_sub_f32 v{32+w}, v{16+2*w}, v3")
    for w in range(8):
        e(f"v_exp_f32 v{32+w}, v{32+w}")
    e("s_nop 0")
    e("v_mul_f32 v4, v32, v17")
    for w in range(1, 8):
        e(f"v_fmac_f32 v4, v{32+w}, v{17+2*w}")
    e(f"v_lshlrev_b32 v5, 2, v{TID}")
    for w in range(8):
        for g in range(4):
            e(f"ds_read_b32 v{48+g}, v5 offset:{(w*4+g)*2048}")
        e("s_waitcnt lgkmcnt(0)")
        e("v_add_f32 v48, v48, v49")
        e("v_add_f32 v50, v50, v51")
        e("v_add_f32 v48, v48, v50")
        if w == 0: e("v_mul_f32 v6, v32, v48")
        else: e(f"v_fmac_f32 v6, v{32+w}, v48")
    e(f"v_mov_b32 v7, v{TAG}")
    e("s_lshl_b32 s34, s2, 12")
    e(f"s_add_u32 s34, s34, {WS_PART}")
    e("v_lshl_add_u32 v5, v5, 1, s34")
    e("global_store_dwordx2 v5, v[6:7], s[14:15] sc1")
    e(f"v_and_b32 v8, 127, v{TID}")
    e("v_cmp_eq_u32 vcc, 0, v8")
    e("s_and_saveexec_b64 s[44:45], vcc")
    e("s_cbranch_execz L_mld")
    e("s_lshl_b32 s34, s2, 6")
    e(f"s_add_u32 s34, s34, {WS_ML}")
    e("v_lshl_add_u32 v8, v1, 4, s34")
    e("v_mov_b32 v12, v3")
    e(f"v_mov_b32 v13, v{TAG}")
    e("v_mov_b32 v14, v4")
    e(f"v_mov_b32 v15, v{TAG}")
    e("global_store_dwordx4 v8, v[12:15], s[14:15] sc1")
    e("L_mld:")
    e("s_or_b64 exec, exec, s[44:45]")
    stamp()
    def tile(wreg, kgsel, lab):
        e("s_barrier")
        e(f"v_lshlrev_b32 v{T0+2}, 4, v{T0}          ; r*16")
        for i in range(2):
            e(f"ds_read_b128 v[{DC+4*i}:{DC+4*i+3}], v{T0+2} offset:{i*128}")
        e("s_waitcnt lgkmcnt(0)")
        gemv2(wreg, DC, OA)
        e(f"v_lshrrev_b32 v{T0+2}, 3, v{TID}")
        e(f"v_lshlrev_b32 v{T0+2}, 10, v{T0+2}")
        e(f"v_lshl_add_u32 v{T0+2}, v{T0+1}, 1, v{T0+2}")
        for b in range(4):
            e(f"ds_write_b128 v{T0+2}, v[{OA+8*b}:{OA+8*b+3}] offset:{8192+b*256}")
            e(f"ds_write_b128 v{T0+2}, v[{OA+8*b+4}:{OA+8*b+7}] offset:{8192+b*256+16}")
        e("s_waitcnt lgkmcnt(0)")
        e("s_barrier")
        e(f"v_cmp_gt_u32 vcc, 256, v{TID}")
        e("s_and_saveexec_b64 s[44:45], vcc")
        e(f"s_cbranch_execz {lab}")
        e(f"v_lshlrev_b32 v{T0+2}, 2, v{TID}")
        e(f"v_add_u32 v{T0+2}, 0x2000, v{T0+2}")
        for g in range(8):
            for r in range(8):
                e(f"ds_read_b32 v{DC+r}, v{T0+2} offset:{(g*8+r)*1024}")
            e("s_waitcnt lgkmcnt(0)")
            for r in range(8):
                if g == 0 and r == 0: e(f"v_mov_b32 v{T0+4}, v{DC}")
                else: e(f"v_add_f32 v{T0+4}, v{T0+4}, v{DC+r}")
        e(f"v_mov_b32 v{T0+5}, v{TAG}")
        e(f"s_lshl_b32 s34, {kgsel}, 14")
        e("s_lshl_b32 s35, s27, 9")
        e("s_add_u32 s34, s34, s35")
        e(f"s_add_u32 s34, s34, {WS_OUTP}")
        e(f"v_lshrrev_b32 v{T0+6}, 6, v{TID}")
        e(f"v_lshlrev_b32 v{T0+6}, 12, v{T0+6}")
        e(f"v_and_b32 v{T0+7}, 63, v{TID}")
        e(f"v_lshl_add_u32 v{T0+6}, v{T0+7}, 3, v{T0+6}")
        e(f"v_add_u32 v{T0+6}, s34, v{T0+6}")
        e(f"global_store_dwordx2 v{T0+6}, v[{T0+4}:{T0+5}], s[14:15] sc1")
        e(f"{lab}:")
        e("s_or_b64 exec, exec, s[44:45]")
    e("s_cmp_ge_u32 s2, 112")
    e("s_cbranch_scc1 L_noB")
    e(f"v_lshrrev_b32 v1, 7, v{TID}")
    e("s_movk_i32 s34, 1792*8")
    e("v_mul_lo_u32 v2, v1, s34")
    e(f"v_and_b32 v3, 127, v{TID}")
    e("v_lshl_add_u32 v2, v3, 3, v2")
    e("s_lshl_b32 s34, s26, 10")
    e(f"s_add_u32 s34, s34, {WS_GP}")
    e("v_add_u32 v2, s34, v2")
    def ldg():
        for q in range(8):
            e(f"global_load_dwordx2 v[{16+2*q}:{17+2*q}], v2, s[14:15] sc1")
            if q != 7: e(f"v_add_u32 v2, {4*1792*8}, v2")
        e(f"v_subrev_u32 v2, {7*4*1792*8}, v2")
    spin(ldg, [17+2*q for q in range(8)], T0+3)
    e("v_add_f32 v16, v16, v18")
    e("v_add_f32 v20, v20, v22")
    e("v_add_f32 v16, v16, v20")
    e("v_add_f32 v24, v24, v26")
    e("v_add_f32 v28, v28, v30")
    e("v_add_f32 v24, v24, v28")
    e("v_cvt_pk_bf16_f32 v16, v16, v24")
    e("v_and_b32 v24, 0xffff0000, v16")
    e("v_lshlrev_b32 v16, 16, v16")
    e("v_max_f32 v16, 0, v16")
    e("v_mul_f32 v16, v16, v24")
    e("v_cvt_pk_bf16_f32 v16, v16, v16")
    e("v_lshlrev_b32 v16, 16, v16")
    e("s_barrier")
    e("v_lshlrev_b32 v2, 4, v3")
    e("v_lshl_add_u32 v2, v1, 2, v2")
    e("ds_write_b32 v2, v16")
    e("s_waitcnt lgkmcnt(0)")
    e("s_add_u32 s53, s26, 32")
    tile(TW, "s53", "L_tB")
    e("L_noB:")
    stamp()
    e(f"v_lshrrev_b32 v1, 7, v{TID}")
    e(f"v_and_b32 v3, 127, v{TID}")
    e("s_lshr_b32 s34, s26, 2               ; kvh")
    e("s_and_b32 s35, s26, 3                ; hh")
    e("s_lshl_b32 s34, s34, 15")
    e("s_lshl_b32 s36, s35, 10")
    e("s_add_u32 s34, s34, s36")
    e(f"s_add_u32 s34, s34, {WS_PART}")
    e("v_lshlrev_b32 v2, 18, v1")
    e("v_lshl_add_u32 v2, v3, 3, v2")
    e("v_add_u32 v2, s34, v2")
    e("s_lshr_b32 s34, s26, 2")
    e("s_lshl_b32 s34, s34, 9")
    e("s_lshl_b32 s36, s35, 4")
    e("s_add_u32 s34, s34, s36")
    e(f"s_add_u32 s34, s34, {WS_ML}")
    e("v_lshlrev_b32 v4, 12, v1")
    e("v_add_u32 v4, s34, v4")
    def ldp():
        for s in range(8):
            e(f"global_load_dwordx2 v[{16+2*s}:{17+2*s}], v2, s[14:15] offset:0 sc1")
            e(f"global_load_dwordx4 v[{32+4*s}:{35+4*s}], v4, s[14:15] offset:{64*s} sc1")
            if s != 7: e("v_add_u32 v2, 0x1000, v2")
        e("v_subrev_u32 v2, 0x7000, v2")
    spin(ldp, [17+2*s for s in range(8)] + [33+4*s for s in range(8)] + [35+4*s for s in range(8)], T0+3)
    e("v_max_f32 v5, v32, v36")
    for s in range(2, 8):
        e(f"v_max_f32 v5, v5, v{32+4*s}")
    for s in range(8):
        e(f"v_sub_f32 v{64+s}, v{32+4*s}, v5")
    for s in range(8):
        e(f"v_exp_f32 v{64+s}, v{64+s}")
    e("s_nop 0")
    e("v_mul_f32 v6, v64, v34")
    e("v_mul_f32 v7, v64, v16")
    for s in range(1, 8):
        e(f"v_fmac_f32 v6, v{64+s}, v{34+4*s}")
        e(f"v_fmac_f32 v7, v{64+s}, v{16+2*s}")
    e("v_rcp_f32 v6, v6")
    e("s_nop 0")
    e("v_mul_f32 v7, v7, v6")
    e("v_cvt_pk_bf16_f32 v7, v7, v7")
    e("v_lshlrev_b32 v7, 16, v7")
    e("s_barrier")
    e("v_lshlrev_b32 v2, 4, v3")
    e("v_lshl_add_u32 v2, v1, 2, v2")
    e("ds_write_b32 v2, v7")
    e("s_waitcnt lgkmcnt(0)")
    tile(TW+8, "s26", "L_tA")
    stamp()
    e("s_cmp_lt_u32 s2, 248")
    e("s_cbranch_scc1 L_end")
    e(f"v_lshlrev_b32 v1, 4, v{LANE}")
    e("global_load_dwordx4 v[32:35], v1, s[22:23]")
    e(f"v_and_b32 v2, 3, v{WAVE}")
    e("v_lshl_add_u32 v2, v2, 10, v1")
    e("global_load_dwordx4 v[36:39], v2, s[4:5]")
    e("s_waitcnt vmcnt(0)")
    e("v_mov_b32 v40, 0")
    for d in range(4):
        e(f"v_lshlrev_b32 v41, 16, v{32+d}")
        e(f"v_lshlrev_b32 v42, 16, v{36+d}")
        e("v_mul_f32 v41, v41, v42")
        e(f"v_and_b32 v43, 0xffff0000, v{32+d}")
        e(f"v_and_b32 v44, 0xffff0000, v{36+d}")
        e("v_mul_f32 v43, v43, v44")
        e("v_cvt_pk_bf16_f32 v41, v41, v43")
        e("v_lshlrev_b32 v42, 16, v41")
        e("v_and_b32 v43, 0xffff0000, v41")
        e("v_add_f32 v40, v40, v42")
        e("v_add_f32 v40, v40, v43")
    e("s_nop 1")
    allreduce(["v40"], "add", ["v41"])
    e("v_cvt_pk_bf16_f32 v40, v40, v40")
    e("v_lshlrev_b32 v40, 16, v40")
    e("v_mul_f32 v41, 0xbfb8aa3b, v40")
    e("v_exp_f32 v41, v41")
    e("s_nop 0")
    e("v_add_f32 v41, 1.0, v41")
    e("v_rcp_f32 v41, v41")
    e("s_nop 0")
    e("v_cvt_pk_bf16_f32 v41, v41, v41")
    e("v_lshlrev_b32 v41, 16, v41")
    e(f"v_lshlrev_b32 v2, 2, v{WAVE}")
    e(f"v_add_u32 v2, {LDS_G}, v2")
    e("ds_write_b32 v2, v41")
    e("s_waitcnt lgkmcnt(0)")
    e("s_barrier")
    e(f"v_cmp_gt_u32 vcc, 256, v{TID}")
    e("s_and_saveexec_b64 s[44:45], vcc")
    e("s_cbranch_execz L_fin")
    e(f"v_lshrrev_b32 v1, 6, v{TID}          ; b")
    e(f"v_and_b32 v3, 63, v{TID}")
    e("v_lshlrev_b32 v2, 12, v1")
    e("v_lshl_add_u32 v2, v3, 3, v2")
    e("s_lshl_b32 s35, s27, 9")
    e(f"s_add_u32 s35, s35, {WS_OUTP}")
    e("v_add_u32 v2, s35, v2")
    def ldo():
        for kg in range(46):
            e(f"global_load_dwordx2 v[{16+2*kg}:{17+2*kg}], v2, s[14:15] sc1")
            if kg != 45: e("v_add_u32 v2, 0x4000, v2")
        e(f"v_subrev_u32 v2, {45*0x4000}, v2")
    spin(ldo, [17+2*kg for kg in range(46)], T0+3)
    e("v_mov_b32 v4, v16")
    for kg in range(1, 32):
        e(f"v_add_f32 v4, v4, v{16+2*kg}")
    e("v_mov_b32 v5, v80")
    for kg in range(33, 46):
        e(f"v_add_f32 v5, v5, v{16+2*kg}")
    e(f"v_lshlrev_b32 v6, 2, v1")
    e(f"v_add_u32 v6, {LDS_G}, v6")
    e("ds_read_b32 v6, v6")
    e("s_waitcnt lgkmcnt(0)")
    e("v_cvt_pk_bf16_f32 v4, v4, v5")
    e("v_and_b32 v5, 0xffff0000, v4")
    e("v_lshlrev_b32 v4, 16, v4")
    e("v_sub_f32 v7, 1.0, v6")
    e("v_cvt_pk_bf16_f32 v7, v7, v7")
    e("v_lshlrev_b32 v7, 16, v7")
    e("v_mul_f32 v4, v6, v4")
    e("v_mul_f32 v5, v7, v5")
    e("v_cvt_pk_bf16_f32 v4, v4, v5")
    e("v_and_b32 v5, 0xffff0000, v4")
    e("v_lshlrev_b32 v4, 16, v4")
    e("v_add_f32 v4, v4, v5")
    e("v_cvt_pk_bf16_f32 v4, v4, v4")
    e("v_lshlrev_b32 v2, 10, v1")
    e("v_lshl_add_u32 v2, v3, 1, v2")
    e("s_lshl_b32 s35, s27, 7")
    e("v_add_u32 v2, s35, v2")
    e("global_store_short v2, v4, s[24:25]")
    e("s_cmp_lg_u32 s2, 248")
    e("s_cbranch_scc1 L_fin")
    e(f"v_cmp_eq_u32 vcc, 0, v{TID}")
    e("s_and_b64 exec, exec, vcc")
    e("v_mov_b32 v2, 0")
    e(f"global_store_dword v2, v{TAG}, s[14:15] sc1")
    e("L_fin:")
    e("s_mov_b64 exec, -1")
    stamp()
    e("L_end2:")
    if STAMP:
        n = nst[0]
        e("s_waitcnt lgkmcnt(0)")
        e(f"s_lshl_b32 s58, s2, 4")
        e(f"v_add_u32 v245, s58, v{WAVE}")
        e("v_lshlrev_b32 v245, 6, v245")
        e(f"v_add_u32 v245, {WS_STAMP}, v245")
        e(f"v_cmp_eq_u32 vcc, 0, v{LANE}")
        e("s_and_saveexec_b64 s[56:57], vcc")
        for k in range(n):
            e(f"v_mov_b32 v246, s{70+2*k}")
            e(f"global_store_dword v245, v246, s[14:15] offset:{4*k}")
    e("L_end:")
    e("s_endpgm")

kernel()
body = "\n".join(L)
body = body.replace(f"global_load_dwordx4 v[{TW+12}:{TW+15}], v{T0+3}, s[12:13] offset:0 nt",
                    f"v_add_u32 v{T0+3}, 0x2000, v{T0+3}\n    global_load_dwordx4 v[{TW+12}:{TW+15}], v{T0+3}, s[12:13] nt")
body = body.replace(f"global_load_dwordx4 v[{TW+4}:{TW+7}], v{T0+3}, s[20:21] offset:0 nt",
                    f"v_add_u32 v{T0+3}, 0x2000, v{T0+3}\n    global_load_dwordx4 v[{TW+4}:{TW+7}], v{T0+3}, s[20:21] nt")
if STAMP:
    body = body.replace("s_cmp_lt_u32 s2, 248\n    s_cbranch_scc1 L_end", "s_cmp_lt_u32 s2, 248\n    s_cbranch_scc1 L_end2")
out = HEADER
out += f"; @launch grid=(256,1,1) block=(512,1,1) lds={LDS_TOTAL}\n"
out += '.amdgcn_target "amdgcn-amd-amdhsa--gfx950"\n.text\n'
out += f".globl {KNAME}\n.p2align 8\n.type {KNAME},@function\n{KNAME}:\n"
out += body + "\n"
out += f""".section .rodata,"a"
.p2align 6
.amdhsa_kernel {KNAME}
  .amdhsa_next_free_vgpr 256
  .amdhsa_next_free_sgpr 102
  .amdhsa_accum_offset 256
  .amdhsa_group_segment_fixed_size 0
  .amdhsa_kernarg_size 104
  .amdhsa_user_sgpr_count 2
  .amdhsa_user_sgpr_kernarg_segment_ptr 1
  .amdhsa_system_sgpr_workgroup_id_x 1
.end_amdhsa_kernel
"""
open(sys.argv[1], "w").write(out)
print("written", len(out))
```
